```python
import torch

def _softmax(x, axis=-1):
    return torch.softmax(x, dim=axis)
def _gelu(x):
    return torch.nn.functional.gelu(x, approximate="tanh")
def _silu(x):
    return torch.nn.functional.silu(x)
def _sigmoid(x):
    return torch.sigmoid(x)
def _layernorm(x, axis=-1, eps=1e-5):
    m = x.mean(dim=axis, keepdim=True)
    v = x.var(dim=axis, keepdim=True, unbiased=False)
    return (x - m) / torch.sqrt(v + eps)
def _scatter_add(tgt, idx, src, axis=0):
    return tgt.clone().index_add_(axis, idx, src)
def _segment_sum(src, seg, n):
    out = torch.zeros((n,) + src.shape[1:], dtype=src.dtype)
    return out.index_add_(0, seg, src)
def _pad(x, pw):
    flat = tuple(v for pair in reversed(pw) for v in pair)
    return torch.nn.functional.pad(x, flat)

kernel_name = 'parallel_sum__gqa_block_cached__dense_activation_silu__decode'

def setup_inputs():

    _w = (lambda a: (lambda t: t.to(torch.bfloat16) if t.is_floating_point() else t)(torch.as_tensor(a)))
    def _A_setup():
        B, Sq, D = 4, 1, 512
        Hq, Hkv, Sk, Dh = 32, 8, 4096, 128
        assert Hq % Hkv == 0, (Hq, Hkv)
        return {
            "x": _w((lambda *s: torch.randn(*s, dtype=torch.bfloat16) * 0.05)(B, Sq, D)),
            "k_cache": _w((lambda *s: torch.randn(*s, dtype=torch.bfloat16) * 3.2)(B, Hkv, Sk, Dh)),
            "v_cache": _w((lambda *s: torch.randn(*s, dtype=torch.bfloat16) * 0.8)(B, Hkv, Sk, Dh)),
            "wq": _w((lambda *s: torch.randn(*s, dtype=torch.bfloat16) * 3.2)(D, Hq * Dh) * (D ** -0.5)),
            "wo": _w((lambda *s: torch.randn(*s, dtype=torch.bfloat16) * 0.8)(Hq * Dh, D) * ((Hq * Dh) ** -0.5)),
        }
    _A_in = _A_setup()

    def _B_setup():
        B, S, D, F = 4, 1, 512, 1792
        return {
            "x": _w((lambda *s: torch.randn(*s, dtype=torch.bfloat16) * 0.05)(B, S, D)),
            "w1": _w((lambda *s: torch.randn(*s, dtype=torch.bfloat16) * 3.2)(D, F) * (D ** -0.5)),
            "w2": _w((lambda *s: torch.randn(*s, dtype=torch.bfloat16) * 0.4)(F, D) * (F ** -0.5)),
        }
    _B_in = _B_setup()

    return {
        "A_x": _A_in["x"],
        "A_k_cache": _A_in["k_cache"],
        "A_v_cache": _A_in["v_cache"],
        "A_wq": _A_in["wq"],
        "A_wo": _A_in["wo"],
        "B_x": _B_in["x"],
        "B_w1": _B_in["w1"],
        "B_w2": _B_in["w2"],
    }

def reference(A_x, A_k_cache, A_v_cache, A_wq, A_wo, B_x, B_w1, B_w2):
    def _A_ref(x, k_cache, v_cache, wq, wo):
        B, Sq, D = x.shape
        Hq, Dh = 32, 128
        Hkv = k_cache.shape[1]
        rep = Hq // Hkv
        q = (lambda x, *d: x.permute(*d))((x @ wq).reshape(B, Sq, Hq, Dh), 0, 2, 1, 3)
        k = (lambda x, n, axis: torch.repeat_interleave(x, n, dim=axis))(k_cache, rep, axis=1)
        v = (lambda x, n, axis: torch.repeat_interleave(x, n, dim=axis))(v_cache, rep, axis=1)
        scores = torch.einsum("bhqd,bhkd->bhqk", q, k) * (Dh ** -0.5)
        p = _softmax(scores, axis=-1)
        o = torch.einsum("bhqk,bhkd->bhqd", p, v)
        return (lambda x, *d: x.permute(*d))(o, 0, 2, 1, 3).reshape(B, Sq, Hq * Dh) @ wo

    def _B_ref(x, w1, w2):
        h = torch.einsum("bsd,df->bsf", x, w1)
        h = _silu(h)
        out = torch.einsum("bsf,fd->bsd", h, w2)
        return out

    x = A_x
    xn = _layernorm(x, axis=-1)
    return x + _A_ref(xn, A_k_cache, A_v_cache, A_wq, A_wo) + _B_ref(xn, B_w1, B_w2)
```

```python
NAME = "parallel_sum__gqa_block_cached__dense_activation_silu__decode"
HEADER = open("cdna_kernels/" + NAME + ".s.ref").read().split("; Override launch")[0]

class A:
    def __init__(self):
        self.lines = []
    def __call__(self, s=""):
        for l in s.split("\n"):
            self.lines.append(l if l.rstrip().endswith(":") else "    " + l.strip())
    def label(self, n):
        self.lines.append(n + ":")
    def text(self):
        return "\n".join(self.lines) + "\n"

def wrap(body, grid, block, lds, vgpr, sgpr=102, accum=None):
    if accum is None: accum = (vgpr + 3) // 4 * 4
    k = NAME + "_kernel"
    return (HEADER + f"; @launch grid=({grid},1,1) block=({block},1,1) lds={lds}\n"
        + '.amdgcn_target "amdgcn-amd-amdhsa--gfx950"\n.text\n'
        + f".globl {k}\n.p2align 8\n.type {k},@function\n{k}:\n" + body
        + f'.section .rodata,"a"\n.p2align 6\n.amdhsa_kernel {k}\n'
        + f"  .amdhsa_next_free_vgpr {vgpr}\n  .amdhsa_next_free_sgpr {sgpr}\n  .amdhsa_accum_offset {accum}\n"
        + "  .amdhsa_group_segment_fixed_size 0\n  .amdhsa_kernarg_size 88\n  .amdhsa_user_sgpr_count 2\n"
        + "  .amdhsa_user_sgpr_kernarg_segment_ptr 1\n  .amdhsa_system_sgpr_workgroup_id_x 1\n"
        + "  .amdhsa_float_denorm_mode_32 3\n"
        + ".end_amdhsa_kernel\n")
```

```python
import sys, struct
from asmlib import *

def f2u(x): return struct.unpack("<I", struct.pack("<f", x))[0]

WS_G  = 0x0
WS_QP = 0x10000
WS_HP = 0x50000
WS_ML = 0x70000
WS_OP = 0x80000
WS_RP = 0x100000
WS_SIZE = 0x200000
WS_STAMP = 128 << 20
X1 = 7 * 16384
X2 = 8 * 16384
SC = 9 * 16384
XA = SC; XB = SC + 1024; QI = SC + 2048; MX = SC + 3072; LX = SC + 3200; AI = SC + 4096
LDS_SIZE = SC + 5120
TAGQ = 8; TAGO = 12
RETRY = 1 << 14

sK, sV, sWS, sW, sX, sO = 8, 12, 16, 20, 24, 28
pX, pK, pV, pWQ, pWO, pBX, pW1, pW2, pOUT, pDBG, pWS = 36, 38, 40, 42, 44, 46, 48, 50, 52, 54, 56
sG, sTQ, sTO = 58, 59, 60
sGB, sLB = 61, 62
sT0, sT1, sT2, sT3 = 63, 64, 65, 66
sRETRY = 67
sMI = 68
sC0, sC1 = 69, 70
sM0 = 72
sST = 80

def srd(n): return f"s[{n}:{n+3}]"
def vr(a, n): return f"v[{a}:{a+n-1}]"

class G(A):
    def __init__(self, stamps):
        super().__init__(); self.stamps = stamps; self.nl = 0
    def newlabel(self, p):
        self.nl += 1; return f"L_{p}_{self.nl}"
    def mksrd(self, s, p, size):
        self(f"s_mov_b32 s{s}, s{p}\ns_mov_b32 s{s+1}, s{p+1}\ns_mov_b32 s{s+2}, {size:#x}\ns_mov_b32 s{s+3}, 0x20000")
    def stamp(self, i):
        if self.stamps: self(f"s_memrealtime s[{sST+2*i}:{sST+2*i+1}]")
    def dump_stamps(self, first, n, slot):
        if not self.stamps: return
        self("s_waitcnt lgkmcnt(0)")
        self(f"s_lshl_b32 s{sT0}, s2, 7\ns_add_u32 s{sT0}, s{sT0}, {WS_STAMP + slot*8:#x}")
        self(f"s_add_u32 s{sT2}, s{pWS}, s{sT0}\ns_addc_u32 s{sT3}, s{pWS+1}, 0")
        self(f"s_mov_b32 s4, s{sT2}\ns_mov_b32 s5, s{sT3}")
        self("s_mov_b64 exec, 1\nv_mov_b32 v1, 0")
        for i in range(n):
            self(f"v_mov_b32 v2, s{sST+2*(first+i)}\nv_mov_b32 v3, s{sST+2*(first+i)+1}")
            self(f"global_store_dwordx2 v1, v[2:3], s[4:5] offset:{8*i}\ns_nop 1")
        self("s_mov_b64 exec, -1")

    def rowreduce(self, v, op="v_add_f32"):
        for r in (8, 4, 2, 1):
            self(f"s_nop 1\n{op}_dpp v{v}, v{v}, v{v} row_ror:{r} row_mask:0xf bank_mask:0xf")
    def xreduce(self, regs, tmps, op="v_add_f32"):
        for sw in ("v_permlane16_swap_b32", "v_permlane32_swap_b32"):
            for v, t in zip(regs, tmps): self(f"v_mov_b32 v{t}, v{v}")
            if len(regs) < 3: self("s_nop 1")
            for v, t in zip(regs, tmps): self(f"{sw} v{v}, v{t}")
            self("s_nop 1")
            for v, t in zip(regs, tmps): self(f"{op} v{v}, v{v}, v{t}")
    def round_bf16(self, d, s):
        self(f"v_cvt_pk_bf16_f32 v{d}, v{s}, v{s}\nv_and_b32 v{d}, 0xffff0000, v{d}")

    def wtile_voff(self, vd, t0, t1, rowbytes):
        self(f"v_lshrrev_b32 v{t0}, 3, v0")
        self(f"v_and_b32 v{t1}, 7, v0")
        self(f"v_lshrrev_b32 v{vd}, 1, v{t0}")
        self(f"v_lshlrev_b32 v{vd}, 1, v{vd}")
        self(f"v_xor_b32 v{vd}, v{vd}, v{t1}")
        self(f"v_lshlrev_b32 v{vd}, 4, v{vd}")
        self(f"s_mov_b32 s{sT3}, {rowbytes}")
        self(f"v_mad_u32_u24 v{vd}, v{t0}, s{sT3}, v{vd}")
    def wtile_dma(self, region, voff, sbase, steps, pol=" nt"):
        for q in range(16):
            self(f"s_mov_b32 m0, {region + q*1024}")
            self(f"s_add_u32 s{sT0}, s{sbase}, {steps[q]}")
            self(f"buffer_load_dwordx4 v{voff}, {srd(sW)}, s{sT0} offen{pol} lds")
    def tr_addr(self, va, vs, region, t0, t1, t2):
        self(f"v_lshrrev_b32 v{t0}, 2, v0")
        self(f"v_and_b32 v{t1}, 3, v0")
        self(f"v_lshlrev_b32 v{t1}, 3, v{t1}")
        self(f"v_lshl_add_u32 v{t1}, v{t0}, 7, v{t1}")
        self(f"v_add_u32 v{t1}, {region}, v{t1}")
        self(f"v_bfe_u32 v{t0}, v0, 3, 2")
        for k, v in enumerate(vs):
            if isinstance(v, int): self(f"v_xor_b32 v{t2}, {v}, v{t0}")
            else: self(f"v_xor_b32 v{t2}, {v}, v{t0}")
            self(f"v_lshl_add_u32 v{va+k}, v{t2}, 5, v{t1}")
    def a_addr(self, vd, img, t0):
        self(f"v_and_b32 v{vd}, 3, v0\nv_lshlrev_b32 v{vd}, 8, v{vd}")
        self(f"v_lshrrev_b32 v{t0}, 4, v0\nv_lshl_add_u32 v{vd}, v{t0}, 3, v{vd}\nv_add_u32 v{vd}, {img}, v{vd}")
    def a_read(self, va, vaddr):
        for ks in range(4):
            self(f"ds_read2_b64 {vr(va+4*ks,4)}, v{vaddr} offset0:{8*ks} offset1:{8*ks+4}")
    def w_read(self, vw, vaddr):
        for ks in range(4):
            self(f"ds_read_b64_tr_b16 {vr(vw+4*ks,2)}, v{vaddr} offset:{ks*4096}")
            self(f"ds_read_b64_tr_b16 {vr(vw+4*ks+2,2)}, v{vaddr} offset:{ks*4096+2048}")

    def x_load(self, vx, t0, t1, sKQ):
        self(f"v_lshrrev_b32 v{t0}, 4, v0\nv_and_b32 v{t1}, 15, v0\nv_lshlrev_b32 v{t1}, 4, v{t1}")
        self(f"v_lshl_add_u32 v{t0}, v{t0}, 10, v{t1}")
        for i in range(4):
            self(f"buffer_load_dwordx4 {vr(vx+4*i,4)}, v{t0}, {srd(sX)}, 0 offen offset:{256*i}")
        self(f"buffer_load_dwordx4 {vr(vx+16,4)}, v{t0}, {srd(sX)}, s{sKQ} offen")
    def layernorm(self, vx, vt, img):
        u = vt
        acc = vt + 32; mean = vt + 33; t = vt + 34; den = vt + 35; rc = vt + 36; t2 = vt + 37; t3 = vt + 38
        for i in range(16):
            self(f"v_lshlrev_b32 v{u+2*i}, 16, v{vx+i}\nv_and_b32 v{u+2*i+1}, 0xffff0000, v{vx+i}")
        self(f"v_add_f32 v{acc}, v{u}, v{u+1}\nv_add_f32 v{t}, v{u+2}, v{u+3}")
        for i in range(4, 32, 2):
            self(f"v_add_f32 v{acc}, v{acc}, v{u+i}\nv_add_f32 v{t}, v{t}, v{u+i+1}")
        self(f"v_add_f32 v{acc}, v{acc}, v{t}")
        self.rowreduce(acc)
        self(f"v_mul_f32 v{mean}, {f2u(1/512):#x}, v{acc}")
        for i in range(32): self(f"v_sub_f32 v{u+i}, v{u+i}, v{mean}")
        self(f"v_mul_f32 v{acc}, v{u}, v{u}\nv_mul_f32 v{t}, v{u+1}, v{u+1}")
        for i in range(2, 32, 2):
            self(f"v_fmac_f32 v{acc}, v{u+i}, v{u+i}\nv_fmac_f32 v{t}, v{u+i+1}, v{u+i+1}")
        self(f"v_add_f32 v{acc}, v{acc}, v{t}")
        self.rowreduce(acc)
        self(f"v_mul_f32 v{acc}, {f2u(1/512):#x}, v{acc}")
        self.round_bf16(acc, acc)
        self(f"v_add_f32 v{acc}, {f2u(1e-5):#x}, v{acc}")
        self.round_bf16(acc, acc)
        self(f"v_sqrt_f32 v{den}, v{acc}\ns_nop 0")
        self.round_bf16(den, den)
        self(f"v_rcp_f32 v{rc}, v{den}")
        self.round_bf16(mean, mean)
        q = vx + 16
        for i in range(4):
            self(f"v_lshlrev_b32 v{u+2*i}, 16, v{q+i}\nv_and_b32 v{u+2*i+1}, 0xffff0000, v{q+i}")
        for i in range(8): self(f"v_sub_f32 v{u+i}, v{u+i}, v{mean}")
        for i in range(4): self(f"v_cvt_pk_bf16_f32 v{u+8+i}, v{u+2*i}, v{u+2*i+1}")
        for i in range(4):
            self(f"v_lshlrev_b32 v{u+2*i}, 16, v{u+8+i}\nv_and_b32 v{u+2*i+1}, 0xffff0000, v{u+8+i}")
        for i in range(8):
            self(f"v_mul_f32 v{u+16+i}, v{u+i}, v{rc}")
            self(f"v_fma_f32 v{u+i}, -v{u+16+i}, v{den}, v{u+i}")
            self(f"v_fma_f32 v{u+i}, v{u+i}, v{rc}, v{u+16+i}")
        for i in range(4): self(f"v_cvt_pk_bf16_f32 v{u+8+i}, v{u+2*i}, v{u+2*i+1}")
        self(f"v_lshrrev_b32 v{t}, 4, v0\nv_and_b32 v{t2}, 15, v0\nv_lshlrev_b32 v{t2}, 4, v{t2}")
        self(f"v_lshl_add_u32 v{t}, v{t}, 8, v{t2}\nv_add_u32 v{t}, {img}, v{t}")
        self(f"ds_write_b128 v{t}, {vr(u+8,4)}")
    def gemv4(self, va, vw, vd, transposed):
        for ks in range(4):
            for v in range(4):
                w = vr(vw + 16*v + 4*ks, 4); x = vr(va + 4*ks, 4); d = vr(vd + 4*v, 4)
                c = "0" if ks == 0 else d
                if transposed: self(f"v_mfma_f32_16x16x32_bf16 {d}, {w}, {x}, {c}")
                else: self(f"v_mfma_f32_16x16x32_bf16 {d}, {x}, {w}, {c}")
        self("s_nop 7")
    def select4(self, vd):
        for v in range(1, 4):
            for r in range(4):
                self(f"v_cndmask_b32 v{vd+r}, v{vd+r}, v{vd+4*v+r}, s[{sM0+2*v}:{sM0+2*v+1}]")
    def masks(self, kind):
        for v in range(4):
            m = (0x000F000F000F000F << (4*v)) if kind == "quad" else (0xFFFF << (16*v))
            self(f"s_mov_b32 s{sM0+2*v}, {m & 0xffffffff:#x}\ns_mov_b32 s{sM0+2*v+1}, {m >> 32:#x}")
    def tags(self):
        self(f"s_add_u32 s{sT0}, s{sG}, 1")
        self(f"s_and_b32 s{sTQ}, s{sT0}, {(1<<TAGQ)-1:#x}\ns_and_b32 s{sTO}, s{sT0}, {(1<<TAGO)-1:#x}")
    def embed(self, regs, vtag, bits):
        self(f"s_mov_b32 s{sMI}, {(~((1<<bits)-1)) & 0xffffffff:#x}")
        for r in regs: self(f"v_and_or_b32 v{r}, v{r}, s{sMI}, v{vtag}")
    def check(self, regs, vacc, stag, bits, retry_label, done_label):
        self(f"v_bitop3_b32 v{vacc}, v{regs[0]}, v{regs[1]}, s{stag} bitop3:0x7e")
        for r in regs[2:]: self(f"v_bitop3_b32 v{vacc}, v{vacc}, v{r}, s{stag} bitop3:0xf6")
        self(f"v_and_b32 v{vacc}, {(1<<bits)-1:#x}, v{vacc}")
        self(f"v_cmp_ne_u32 vcc, 0, v{vacc}")
        self(f"s_cbranch_vccz {done_label}")
        self(f"s_sub_u32 s{sRETRY}, s{sRETRY}, 1\ns_cmp_lg_u32 s{sRETRY}, 0\ns_cbranch_scc1 {retry_label}")
        self.label(done_label)
    def strip(self, regs, bits):
        for r in regs: self(f"v_and_b32 v{r}, {(~((1<<bits)-1)) & 0xffffffff:#x}, v{r}")


def gen(stamps=False):
    a = G(stamps)
    a.stamp(0)
    a("s_cmp_ge_u32 s2, 256\ns_cbranch_scc1 L_end")
    a(f"s_load_dwordx16 s[36:51], s[0:1], 0\ns_load_dwordx4 s[52:55], s[0:1], 64\ns_load_dwordx2 s[56:57], s[0:1], 80")
    a("v_lshrrev_b32 v1, 6, v0\nv_and_b32 v0, 63, v0\ns_nop 0\nv_readfirstlane_b32 s3, v1")
    a("v_lshrrev_b32 v1, 4, v0\nv_and_b32 v2, 15, v0\nv_lshlrev_b32 v3, 2, v1\nv_xor_b32 v2, v2, v3\nv_lshlrev_b32 v1, 8, v1")
    for q in range(4):
        a(f"v_xor_b32 v3, {q}, v2\nv_lshl_add_u32 v{4+q}, v3, 4, v1")
    a("v_lshlrev_b32 v8, 4, v0")
    a(f"s_mov_b32 s{sRETRY}, {RETRY}")
    a(f"s_lshl_b32 s{sGB}, s2, 17")
    a("s_waitcnt lgkmcnt(0)")
    a(f"s_load_dword s{sG}, s[{pWS}:{pWS+1}], {WS_G}")
    a.mksrd(sK, pK, 0x2000000)
    a.mksrd(sWS, pWS, WS_SIZE)
    a("s_cmp_lt_u32 s3, 2\ns_cbranch_scc1 L_service")

    VB = 16; QB = 80; KB = 96; SB = 128; AC = 144; T = 152
    a.mksrd(sV, pV, 0x2000000)
    a("s_sub_u32 s3, s3, 2")
    a(f"s_lshl_b32 s{sLB}, s3, 14\ns_add_u32 s{sGB}, s{sGB}, s{sLB}")
    a("s_cmp_eq_u32 s3, 7\ns_cbranch_scc1 L_skipk")
    def kdma():
        for t in range(4):
            a(f"s_add_u32 m0, s{sLB}, {t*4096}\ns_add_u32 s{sT0}, s{sGB}, {t*4096}")
            for q in range(4):
                a(f"buffer_load_dwordx4 v{4+q}, {srd(sK)}, s{sT0} offen offset:{q*1024} nt lds")
    kdma()
    a.label("L_skipk")
    for t in range(4):
        a(f"s_add_u32 s{sT0}, s{sGB}, {t*4096}")
        for q in range(4):
            a(f"buffer_load_dwordx4 {vr(VB+16*t+4*q,4)}, v8, {srd(sV)}, s{sT0} offen offset:{q*1024} nt")
    a.stamp(1)
    a("v_and_b32 v1, 15, v0\nv_lshrrev_b32 v2, 4, v0")
    a("v_and_b32 v3, 3, v1\nv_lshlrev_b32 v3, 2, v3\nv_lshrrev_b32 v9, 2, v1\nv_add_u32 v3, v3, v9")
    a(f"v_lshlrev_b32 v3, 8, v3\nv_add_u32 v3, s{sLB}, v3\nv_xor_b32 v1, v1, v2\nv_lshl_add_u32 v4, v1, 4, v3")
    for ks in range(1, 4): a(f"v_xor_b32 v{4+ks}, {64*ks}, v4")
    a(f"v_and_b32 v9, 3, v0\nv_lshlrev_b32 v9, 8, v9\nv_lshl_add_u32 v9, v2, 4, v9\nv_add_u32 v9, {QI}, v9")
    a.masks("quad")
    a(f"s_mov_b32 s{sC0}, 0x05040100\ns_mov_b32 s{sC1}, 0x07060302")
    a("s_waitcnt vmcnt(16)")
    a.stamp(2)
    a("s_barrier")
    a.stamp(3)
    for ks in range(4): a(f"ds_read_b128 {vr(QB+4*ks,4)}, v9 offset:{64*ks}")
    def kread(t):
        for ks in range(4): a(f"ds_read_b128 {vr(KB+16*(t&1)+4*ks,4)}, v{4+ks} offset:{4096*t}")
    kread(0); kread(1)
    a("s_waitcnt lgkmcnt(0)")
    a.tags()
    for t in range(4):
        if t >= 2: a(f"s_waitcnt lgkmcnt({4 if t == 2 else 0})")
        for ks in range(4):
            d = vr(SB+4*t, 4)
            a(f"v_mfma_f32_16x16x32_bf16 {d}, {vr(KB+16*(t&1)+4*ks,4)}, {vr(QB+4*ks,4)}, {'0' if ks == 0 else d}")
        if t < 2: kread(t + 2)
    a("s_nop 7")
    for i in range(8):
        x, y = SB + 2*i, SB + 2*i + 1
        a(f"v_cvt_pk_bf16_f32 v{T}, v{x}, v{y}\nv_lshlrev_b32 v{x}, 16, v{T}\nv_and_b32 v{y}, 0xffff0000, v{T}")
        a(f"v_mul_f32 v{x}, {f2u(128**-0.5):#x}, v{x}\nv_mul_f32 v{y}, {f2u(128**-0.5):#x}, v{y}")
        a(f"v_cvt_pk_bf16_f32 v{T}, v{x}, v{y}\nv_lshlrev_b32 v{x}, 16, v{T}\nv_and_b32 v{y}, 0xffff0000, v{T}")
    vM = 10; vL = 11
    a(f"v_max3_f32 v{vM}, v{SB}, v{SB+1}, v{SB+2}")
    for i in range(3, 15, 2): a(f"v_max3_f32 v{vM}, v{vM}, v{SB+i}, v{SB+i+1}")
    a(f"v_max_f32 v{vM}, v{vM}, v{SB+15}")
    a.xreduce([vM], [T], "v_max_f32")
    a(f"v_and_b32 v1, 3, v0\nv_lshlrev_b32 v1, 5, v1\nv_add_u32 v12, {MX}, v1\ns_lshl_b32 s{sT0}, s3, 2\nv_add_u32 v13, s{sT0}, v12")
    a(f"ds_write_b32 v13, v{vM}\ns_waitcnt lgkmcnt(0)")
    a("s_barrier")
    a.stamp(4)
    a(f"ds_read_b128 {vr(T,4)}, v12\nds_read_b128 {vr(T+4,4)}, v12 offset:16\ns_waitcnt lgkmcnt(0)")
    a(f"v_max3_f32 v{vM}, v{T}, v{T+1}, v{T+2}\nv_max3_f32 v{vM}, v{vM}, v{T+3}, v{T+4}\nv_max3_f32 v{vM}, v{vM}, v{T+5}, v{T+6}\nv_max_f32 v{vM}, v{vM}, v{T+7}")
    a(f"s_mov_b32 s{sT0}, {f2u(1.4426950408889634):#x}")
    for i in range(16): a(f"v_sub_f32 v{SB+i}, v{SB+i}, v{vM}")
    for i in range(16): a(f"v_mul_f32 v{SB+i}, s{sT0}, v{SB+i}")
    for i in range(16): a(f"v_exp_f32 v{SB+i}, v{SB+i}")
    a(f"v_add_f32 v{vL}, v{SB}, v{SB+1}\nv_add_f32 v{T}, v{SB+2}, v{SB+3}")
    for i in range(4, 16, 2): a(f"v_add_f32 v{vL}, v{vL}, v{SB+i}\nv_add_f32 v{T}, v{T}, v{SB+i+1}")
    a(f"v_add_f32 v{vL}, v{vL}, v{T}")
    for t in range(2):
        for jj in range(4): a(f"v_cvt_pk_bf16_f32 v{T+jj}, v{SB+8*t+2*jj}, v{SB+8*t+2*jj+1}")
        for v in range(4):
            for jj in range(4):
                a(f"v_cndmask_b32 v{KB+16*t+4*v+jj}, 0, v{T+jj}, s[{sM0+2*v}:{sM0+2*v+1}]")
    a.xreduce([vL], [T])
    a(f"ds_write_b32 v13, v{vL} offset:{LX-MX}")
    a(f"v_lshlrev_b32 v14, 2, v0\nv_add_u32 v14, s{sLB}, v14")
    for t in range(2):
        a(f"s_waitcnt vmcnt({8 if t == 0 else 0})")
        if t == 1: a.stamp(5)
        for p in range(4):
            be = QB + 8 * (p & 1); bo = be + 4
            for jj in range(4):
                a(f"v_perm_b32 v{be+jj}, v{VB+32*t+4*(2*jj+1)+p}, v{VB+32*t+4*(2*jj)+p}, s{sC0}")
            for jj in range(4):
                a(f"v_perm_b32 v{bo+jj}, v{VB+32*t+4*(2*jj+1)+p}, v{VB+32*t+4*(2*jj)+p}, s{sC1}")
            first = (t == 0 and p == 0)
            A_ = vr(KB + 16*t + 4*p, 4)
            a(f"v_mfma_f32_16x16x32_bf16 {vr(AC,4)}, {A_}, {vr(be,4)}, {'0' if first else vr(AC,4)}")
            a("s_nop 0")
            a(f"v_mfma_f32_16x16x32_bf16 {vr(AC+4,4)}, {A_}, {vr(bo,4)}, {'0' if first else vr(AC+4,4)}")
    a("s_nop 7")
    for r in range(4):
        a(f"ds_write2st64_b32 v14, v{AC+r}, v{AC+4+r} offset0:{2*r} offset1:{2*r+1}")
    a("s_waitcnt lgkmcnt(0)")
    a("s_barrier")
    a.stamp(6)
    a(f"s_lshr_b32 s{sT0}, s2, 3\ns_and_b32 s{sT0}, s{sT0}, 7\ns_lshl_b32 s{sT0}, s{sT0}, 7")
    a(f"s_lshr_b32 s{sT1}, s2, 6\ns_lshl_b32 s{sT1}, s{sT1}, 3\ns_add_u32 s{sT0}, s{sT0}, s{sT1}")
    a(f"s_and_b32 s{sT1}, s2, 7\ns_add_u32 s{sT0}, s{sT0}, s{sT1}")
    a(f"v_mov_b32 v15, s{sTO}")
    a("s_cmp_gt_u32 s3, 2\ns_cbranch_scc1 L_t2")
    a("s_cmp_eq_u32 s3, 2\ns_cbranch_scc1 L_hdr")
    a(f"s_lshl_b32 s{sT1}, s3, 10\nv_add_u32 v1, s{sT1}, v8\nv_add_u32 v2, 0x10000, v1")
    for u in range(8):
        a(f"ds_read_b128 {vr(VB+4*u,4)}, v{1 + (u >> 2)} offset:{(u & 3) * 16384}")
    a(f"v_lshrrev_b32 v3, 9, v1\nv_lshlrev_b32 v3, 14, v3\nv_and_b32 v4, 0x1ff, v1\nv_add_u32 v3, v3, v4")
    a(f"s_lshl_b32 s{sT0}, s{sT0}, 9\ns_add_u32 s{sT0}, s{sT0}, {WS_OP}")
    for u in range(1, 8):
        a(f"s_waitcnt lgkmcnt({7-u})")
        a(f"v_pk_add_f32 {vr(VB,2)}, {vr(VB,2)}, {vr(VB+4*u,2)}\nv_pk_add_f32 {vr(VB+2,2)}, {vr(VB+2,2)}, {vr(VB+4*u+2,2)}")
    a.embed(range(VB, VB+4), 15, TAGO)
    a(f"buffer_store_dwordx4 {vr(VB,4)}, v3, {srd(sWS)}, s{sT0} offen sc1")
    a("s_branch L_t2")
    a.label("L_hdr")
    a(f"ds_read_b128 {vr(VB,4)}, v12 offset:{LX-MX}\nds_read_b128 {vr(VB+4,4)}, v12 offset:{LX-MX+16}")
    a(f"v_lshlrev_b32 v3, 8, v0\ns_lshl_b32 s{sT0}, s{sT0}, 3\ns_add_u32 s{sT0}, s{sT0}, {WS_ML}")
    a("s_waitcnt lgkmcnt(0)")
    a(f"v_pk_add_f32 {vr(VB,2)}, {vr(VB,2)}, {vr(VB+2,2)}\nv_pk_add_f32 {vr(VB+4,2)}, {vr(VB+4,2)}, {vr(VB+6,2)}")
    a(f"v_pk_add_f32 {vr(VB,2)}, {vr(VB,2)}, {vr(VB+4,2)}\nv_add_f32 v{VB+1}, v{VB}, v{VB+1}\nv_mov_b32 v{VB}, v{vM}")
    a.embed([VB, VB+1], 15, TAGO)
    a("s_mov_b64 exec, 15")
    a(f"buffer_store_dwordx2 {vr(VB,2)}, v3, {srd(sWS)}, s{sT0} offen sc1")
    a("s_mov_b64 exec, -1")
    a.label("L_t2")
    a(f"s_lshr_b32 s{sT0}, s2, 3\ns_lshl_b32 s{sT0}, s{sT0}, 5\ns_lshr_b32 s{sT1}, s3, 1\ns_lshl_b32 s{sT1}, s{sT1}, 3\ns_add_u32 s{sT0}, s{sT0}, s{sT1}")
    a(f"s_lshl_b32 s{sT2}, s{sT0}, 3\ns_add_u32 s{sT2}, s{sT2}, {WS_ML}")
    a(f"s_lshl_b32 s{sT0}, s{sT0}, 9\ns_and_b32 s{sT1}, s3, 1\ns_lshl_b32 s{sT1}, s{sT1}, 8\ns_add_u32 s{sT0}, s{sT0}, s{sT1}\ns_add_u32 s{sT0}, s{sT0}, {WS_OP}")
    a("v_lshrrev_b32 v1, 4, v0\nv_and_b32 v2, 15, v0\nv_lshlrev_b32 v2, 4, v2\nv_lshl_add_u32 v2, v1, 9, v2\nv_lshlrev_b32 v1, 3, v1")
    D0 = VB + 32; D1 = D0 + 4; H0 = D0 + 8; H1 = D0 + 10
    a.label("L_t2poll")
    a(f"buffer_load_dwordx4 {vr(D0,4)}, v2, {srd(sWS)}, s{sT0} offen sc1")
    a(f"buffer_load_dwordx4 {vr(D1,4)}, v2, {srd(sWS)}, s{sT0} offen offset:2048 sc1")
    a(f"buffer_load_dwordx2 {vr(H0,2)}, v1, {srd(sWS)}, s{sT2} offen sc1")
    a(f"buffer_load_dwordx2 {vr(H1,2)}, v1, {srd(sWS)}, s{sT2} offen offset:32 sc1")
    a("s_waitcnt vmcnt(0)")
    a.check(list(range(D0, D0+12)), 3, sTO, TAGO, "L_t2poll", "L_t2ok")
    a.stamp(7)
    a.strip(range(D0, D0+12), TAGO)
    a(f"v_max_f32 v{T}, v{H0}, v{H1}")
    a.xreduce([T], [T+1], "v_max_f32")
    a(f"s_mov_b32 s{sT3}, {f2u(1.4426950408889634):#x}")
    a(f"v_sub_f32 v{H0}, v{H0}, v{T}\nv_sub_f32 v{H1}, v{H1}, v{T}\nv_mul_f32 v{H0}, s{sT3}, v{H0}\nv_mul_f32 v{H1}, s{sT3}, v{H1}")
    a(f"v_exp_f32 v{H0}, v{H0}\nv_exp_f32 v{H1}, v{H1}\ns_nop 0")
    a(f"v_mul_f32 v{T+4}, v{H0}, v{H0+1}\nv_fmac_f32 v{T+4}, v{H1}, v{H1+1}")
    for i in range(4): a(f"v_mul_f32 v{T+i}, v{H0}, v{D0+i}\nv_fmac_f32 v{T+i}, v{H1}, v{D1+i}")
    a.xreduce([T, T+1, T+2, T+3, T+4], [D0, D0+1, D0+2, D0+3, D0+4])
    a(f"v_rcp_f32 v{T+4}, v{T+4}\ns_nop 0")
    for i in range(4): a(f"v_mul_f32 v{T+i}, v{T+i}, v{T+4}")
    a(f"v_cvt_pk_bf16_f32 v{T}, v{T}, v{T+1}\nv_cvt_pk_bf16_f32 v{T+1}, v{T+2}, v{T+3}")
    a(f"s_lshl_b32 s{sT1}, s3, 7\ns_add_u32 s{sT1}, s{sT1}, {AI}\nv_lshlrev_b32 v3, 3, v0\nv_add_u32 v3, s{sT1}, v3")
    a(f"s_mov_b64 exec, 0xffff\nds_write_b64 v3, {vr(T,2)}\ns_mov_b64 exec, -1")
    a.a_addr(4, AI, 5)
    a.tr_addr(5, ["s3"], X2, 6, 7, 9)
    a("s_waitcnt lgkmcnt(0)")
    a("s_barrier")
    a.stamp(8)
    a("s_cmp_gt_u32 s3, 3\ns_cbranch_scc1 L_sdone")
    a.a_read(QB, 4)
    a.w_read(KB, 5)
    a(f"s_and_b32 s{sT0}, s2, 7\ns_mul_i32 s{sT0}, s{sT0}, 48\ns_lshr_b32 s{sT1}, s2, 3\ns_add_u32 s{sT0}, s{sT0}, s{sT1}")
    a(f"s_lshl_b32 s{sT0}, s{sT0}, 10\ns_lshl_b32 s{sT1}, s3, 8\ns_add_u32 s{sT0}, s{sT0}, s{sT1}\ns_add_u32 s{sT0}, s{sT0}, {WS_RP}")
    a("s_waitcnt lgkmcnt(0)")
    for ks in range(4):
        a(f"v_mfma_f32_16x16x32_bf16 {vr(AC,4)}, {vr(QB+4*ks,4)}, {vr(KB+4*ks,4)}, {'0' if ks == 0 else vr(AC,4)}")
    a("s_nop 7")
    a.embed(range(AC, AC+4), 15, TAGO)
    a("s_mov_b64 exec, 0xffff")
    a(f"buffer_store_dwordx4 {vr(AC,4)}, v8, {srd(sWS)}, s{sT0} offen sc1")
    a("s_mov_b64 exec, -1")
    a.label("L_sdone")
    if stamps:
        a.stamp(9)
        a("s_cmp_lg_u32 s3, 3\ns_cbranch_scc1 L_end")
        a.dump_stamps(0, 10, 0)
    a("s_endpgm")

    a.label("L_service")
    a("s_setprio 3")
    a.mksrd(sX, pX, 4096)
    VX = 16; VT = 40; VA = 80; VW = 96; VD = 16; VO = 10; VTA = 12
    sKQ = 32; sBase = 33
    a(f"s_and_b32 s{sKQ}, s2, 3\ns_lshl_b32 s{sKQ}, s{sKQ}, 8")
    a("s_cmp_eq_u32 s3, 1\ns_cbranch_scc1 L_svcB")
    a.mksrd(sW, pWQ, 512 * 4096 * 2)
    a.x_load(VX, 1, 2, sKQ)
    a.wtile_voff(VO, 1, 2, 8192)
    a(f"s_and_b32 s{sBase}, s2, 3\ns_lshl_b32 s{sBase}, s{sBase}, 20\ns_lshr_b32 s{sT1}, s2, 2\ns_lshl_b32 s{sT1}, s{sT1}, 7\ns_add_u32 s{sBase}, s{sBase}, s{sT1}")
    a.wtile_dma(X1, VO, sBase, [8 * q * 8192 for q in range(16)])
    a("s_waitcnt vmcnt(16)")
    a.layernorm(VX, VT, XA)
    a.a_addr(11, XA, 1)
    a.tr_addr(VTA, [0, 1, 2, 3], X1, 1, 2, 3)
    a.masks("quad")
    a("s_waitcnt lgkmcnt(0)")
    a.tags()
    a.a_read(VA, 11)
    a("s_waitcnt vmcnt(0)")
    a.stamp(1)
    for v in range(4): a.w_read(VW + 16*v, VTA + v)
    a("s_waitcnt lgkmcnt(0)")
    a(f"s_mov_b32 s{sLB}, {X1}\ns_add_u32 s{sGB}, s{sGB}, {7*16384}")
    kdma()
    a.gemv4(VA, VW, VD, True)
    a.select4(VD)
    a(f"v_mov_b32 v9, s{sTQ}")
    a.embed(range(VD, VD+4), 9, TAGQ)
    a("v_and_b32 v1, 3, v0\nv_lshlrev_b32 v1, 16, v1\nv_bfe_u32 v2, v0, 2, 2\nv_lshl_add_u32 v1, v2, 6, v1\nv_lshrrev_b32 v2, 4, v0\nv_lshl_add_u32 v1, v2, 4, v1")
    a(f"s_lshl_b32 s{sT0}, s{sKQ}, 6\ns_lshr_b32 s{sT1}, s2, 2\ns_lshl_b32 s{sT1}, s{sT1}, 8\ns_add_u32 s{sT0}, s{sT0}, s{sT1}\ns_add_u32 s{sT0}, s{sT0}, {WS_QP}")
    a(f"buffer_store_dwordx4 {vr(VD,4)}, v1, {srd(sWS)}, s{sT0} offen sc1")
    a.stamp(2)
    a(f"s_lshr_b32 s{sT0}, s2, 6\ns_lshl_b32 s{sT0}, s{sT0}, 16\ns_lshr_b32 s{sT1}, s2, 3\ns_and_b32 s{sT1}, s{sT1}, 7\ns_lshl_b32 s{sT1}, s{sT1}, 11")
    a(f"s_add_u32 s{sBase}, s{sT0}, s{sT1}\ns_add_u32 s{sBase}, s{sBase}, {WS_QP}")
    PQ = 40
    a.label("L_qpoll")
    for kq in range(4):
        a(f"s_add_u32 s{sT0}, s{sBase}, {kq*16384}")
        for hf in range(2):
            a(f"buffer_load_dwordx4 {vr(PQ+8*kq+4*hf,4)}, v8, {srd(sWS)}, s{sT0} offen offset:{hf*1024} sc1")
    a("s_waitcnt vmcnt(0)")
    a.check(list(range(PQ, PQ+32)), 1, sTQ, TAGQ, "L_qpoll", "L_qok")
    a.stamp(3)
    a.strip(range(PQ, PQ+32), TAGQ)
    for kq in range(1, 4):
        for i in range(0, 8, 2): a(f"v_pk_add_f32 {vr(PQ+i,2)}, {vr(PQ+i,2)}, {vr(PQ+8*kq+i,2)}")
    for i in range(4): a(f"v_cvt_pk_bf16_f32 v{PQ+8+i}, v{PQ+2*i}, v{PQ+2*i+1}")
    a(f"v_lshlrev_b32 v1, 3, v0\nv_add_u32 v1, {QI}, v1")
    a(f"ds_write_b64 v1, {vr(PQ+8,2)}\nds_write_b64 v1, {vr(PQ+10,2)} offset:512")
    a.mksrd(sW, pWO, 4096 * 512 * 2)
    a.wtile_voff(VO, 1, 2, 8192)
    a(f"s_lshr_b32 s{sBase}, s2, 3\ns_lshl_b32 s{sBase}, s{sBase}, 17\ns_and_b32 s{sT1}, s2, 7\ns_lshl_b32 s{sT1}, s{sT1}, 7\ns_add_u32 s{sBase}, s{sBase}, s{sT1}")
    a("s_waitcnt lgkmcnt(0)")
    a("s_barrier")
    a.wtile_dma(X2, VO, sBase, [(64*(q % 2) + 2*((q // 2) % 4) + q // 8) * 1024 for q in range(16)])
    a.mksrd(sO, pOUT, 4096)
    a(f"v_lshrrev_b32 v1, 2, v0\nv_and_b32 v1, 3, v1\nv_lshlrev_b32 v1, 10, v1\nv_and_b32 v2, 3, v0\nv_lshl_add_u32 v12, v2, 1, v1")
    a(f"s_lshl_b32 s{sT0}, s2, 3\nv_add_u32 v12, s{sT0}, v12")
    a(f"buffer_load_ushort v13, v12, {srd(sX)}, 0 offen")
    a("s_barrier")
    a("s_barrier")
    a("s_waitcnt vmcnt(0)")
    a("s_barrier")
    a.stamp(4)
    a("s_cmp_ge_u32 s2, 128\ns_cbranch_scc1 L_adone")
    a(f"s_lshr_b32 s{sT0}, s2, 4\ns_mul_i32 s{sT0}, s{sT0}, {48*1024}\ns_and_b32 s{sT1}, s2, 15\ns_lshl_b32 s{sT1}, s{sT1}, 6\ns_add_u32 s{sT0}, s{sT0}, s{sT1}\ns_add_u32 s{sT0}, s{sT0}, {WS_RP}")
    a(f"s_add_u32 s{sT1}, s{sT0}, 16384\ns_add_u32 s{sT2}, s{sT0}, 32768")
    a("v_lshrrev_b32 v1, 2, v0\nv_and_b32 v2, 3, v0\nv_lshlrev_b32 v2, 4, v2\nv_min_u32 v3, 13, v1\nv_lshl_add_u32 v3, v3, 10, v2\nv_lshl_add_u32 v2, v1, 10, v2")
    a("v_cmp_gt_u32 s[4:5], 14, v1")
    R = 16
    a.label("L_rpoll")
    a(f"buffer_load_dwordx4 {vr(R,4)}, v2, {srd(sWS)}, s{sT0} offen sc1")
    a(f"buffer_load_dwordx4 {vr(R+4,4)}, v2, {srd(sWS)}, s{sT1} offen sc1")
    a(f"buffer_load_dwordx4 {vr(R+8,4)}, v3, {srd(sWS)}, s{sT2} offen sc1")
    a("s_waitcnt vmcnt(0)")
    a.check(list(range(R, R+12)), 4, sTO, TAGO, "L_rpoll", "L_rok")
    a.stamp(5)
    a.strip(range(R, R+12), TAGO)
    for i in range(4): a(f"v_add_f32 v{R+i}, v{R+i}, v{R+4+i}")
    for i in range(4): a(f"v_cndmask_b32 v{R+4+i}, 0, v{R+8+i}, s[4:5]")
    for rr in (4, 8):
        a("s_nop 1")
        for i in range(8): a(f"v_add_f32_dpp v{R+i}, v{R+i}, v{R+i} row_ror:{rr} row_mask:0xf bank_mask:0xf")
    a.xreduce(list(range(R, R+8)), list(range(R+8, R+16)))
    a.masks("quad")
    for v in range(1, 4):
        a(f"v_cndmask_b32 v{R}, v{R}, v{R+v}, s[{sM0+2*v}:{sM0+2*v+1}]")
        a(f"v_cndmask_b32 v{R+4}, v{R+4}, v{R+4+v}, s[{sM0+2*v}:{sM0+2*v+1}]")
    a.round_bf16(R, R); a.round_bf16(R+4, R+4)
    a(f"v_lshlrev_b32 v13, 16, v13\nv_add_f32 v{R}, v13, v{R}")
    a.round_bf16(R, R)
    a(f"v_add_f32 v{R}, v{R}, v{R+4}\nv_cvt_pk_bf16_f32 v{R}, v{R}, v{R}")
    a("s_mov_b64 exec, 0xffff")
    a(f"buffer_store_short v{R}, v12, {srd(sO)}, 0 offen")
    a("s_mov_b64 exec, -1")
    a("s_cmp_lg_u32 s2, 0\ns_cbranch_scc1 L_adone")
    a(f"s_add_u32 s{sT0}, s{sG}, 1\nv_mov_b32 v1, s{sT0}\nv_mov_b32 v2, {WS_G}\ns_mov_b64 exec, 1")
    a(f"buffer_store_dword v1, v2, {srd(sWS)}, 0 offen")
    a("s_mov_b64 exec, -1")
    a.label("L_adone")
    if stamps:
        a.stamp(6)
        a.dump_stamps(1, 6, 10)
    a("s_endpgm")

    a.label("L_svcB")
    a("s_cmp_ge_u32 s2, 112\ns_cbranch_scc1 L_notf1")
    a.mksrd(sW, pW1, 512 * 1792 * 2)
    a.x_load(VX, 1, 2, sKQ)
    a.wtile_voff(VO, 1, 2, 3584)
    a(f"s_and_b32 s{sBase}, s2, 3\ns_mul_i32 s{sBase}, s{sBase}, {128*3584}\ns_lshr_b32 s{sT1}, s2, 2\ns_lshl_b32 s{sT1}, s{sT1}, 7\ns_add_u32 s{sBase}, s{sBase}, s{sT1}")
    a.wtile_dma(X2, VO, sBase, [8 * q * 3584 for q in range(16)])
    a("s_waitcnt vmcnt(16)")
    a.layernorm(VX, VT, XB)
    a.a_addr(11, XB, 1)
    a.tr_addr(VTA, [0, 1, 2, 3], X2, 1, 2, 3)
    a.masks("quad")
    a("s_waitcnt lgkmcnt(0)")
    a.tags()
    a.a_read(VA, 11)
    a("s_waitcnt vmcnt(0)")
    for v in range(4): a.w_read(VW + 16*v, VTA + v)
    a("s_waitcnt lgkmcnt(0)")
    a.gemv4(VA, VW, VD, True)
    a.select4(VD)
    a(f"v_mov_b32 v9, s{sTQ}")
    a.embed(range(VD, VD+4), 9, TAGQ)
    a(f"v_and_b32 v1, 3, v0\nv_mul_u32_u24 v1, {4*7168}, v1\nv_bfe_u32 v2, v0, 2, 2\nv_lshl_add_u32 v1, v2, 6, v1\nv_lshrrev_b32 v2, 4, v0\nv_lshl_add_u32 v1, v2, 4, v1")
    a(f"s_and_b32 s{sT0}, s2, 3\ns_mul_i32 s{sT0}, s{sT0}, 7168\ns_lshr_b32 s{sT1}, s2, 2\ns_lshl_b32 s{sT1}, s{sT1}, 8\ns_add_u32 s{sT0}, s{sT0}, s{sT1}\ns_add_u32 s{sT0}, s{sT0}, {WS_HP}")
    a(f"buffer_store_dwordx4 {vr(VD,4)}, v1, {srd(sWS)}, s{sT0} offen sc1")
    a("s_endpgm")
    a.label("L_notf1")
    a("s_cmp_lt_u32 s2, 128\ns_cbranch_scc1 L_end\ns_cmp_ge_u32 s2, 240\ns_cbranch_scc1 L_end")
    sRB = 34
    a.mksrd(sW, pW2, 1792 * 512 * 2)
    a(f"s_sub_u32 s{sRB}, s2, 128\ns_lshr_b32 s{sRB}, s{sRB}, 3")
    a.wtile_voff(VO, 1, 2, 1024)
    a(f"s_lshl_b32 s{sBase}, s{sRB}, 17\ns_and_b32 s{sT1}, s2, 7\ns_lshl_b32 s{sT1}, s{sT1}, 7\ns_add_u32 s{sBase}, s{sBase}, s{sT1}")
    a.wtile_dma(X2, VO, sBase, [8 * q * 1024 for q in range(16)])
    a.a_addr(11, XB, 1)
    a.tr_addr(VTA, [0, 1, 2, 3], X2, 1, 2, 3)
    a.masks("row")
    a(f"v_lshrrev_b32 v1, 5, v0\nv_and_b32 v2, 31, v0\nv_mul_u32_u24 v3, {4*7168}, v1\nv_lshl_add_u32 v3, v2, 4, v3")
    a(f"v_lshlrev_b32 v1, 8, v1\nv_lshl_add_u32 v4, v2, 3, v1\nv_add_u32 v4, {XB}, v4")
    a(f"s_lshl_b32 s{sBase}, s{sRB}, 9\ns_add_u32 s{sBase}, s{sBase}, {WS_HP}")
    a("s_waitcnt lgkmcnt(0)")
    a.tags()
    a("s_waitcnt vmcnt(0)")
    for v in range(4): a.w_read(VW + 16*v, VTA + v)
    PH = 40
    a.label("L_hpoll")
    for kq in range(4):
        for bh in range(2):
            a(f"s_add_u32 s{sT0}, s{sBase}, {(8*bh + kq) * 7168}")
            a(f"buffer_load_dwordx4 {vr(PH+8*kq+4*bh,4)}, v3, {srd(sWS)}, s{sT0} offen sc1")
    a("s_waitcnt vmcnt(0)")
    a.check(list(range(PH, PH+32)), 1, sTQ, TAGQ, "L_hpoll", "L_hok")
    a.strip(range(PH, PH+32), TAGQ)
    for kq in range(1, 4):
        for i in range(0, 8, 2): a(f"v_pk_add_f32 {vr(PH+i,2)}, {vr(PH+i,2)}, {vr(PH+8*kq+i,2)}")
    for i in range(4): a(f"v_cvt_pk_bf16_f32 v{PH+8+i}, v{PH+2*i}, v{PH+2*i+1}")
    for i in range(4): a(f"v_lshlrev_b32 v{PH+2*i}, 16, v{PH+8+i}\nv_and_b32 v{PH+2*i+1}, 0xffff0000, v{PH+8+i}")
    for i in range(8): a(f"v_mul_f32 v{PH+16+i}, {f2u(-1.4426950408889634):#x}, v{PH+i}")
    for i in range(8): a(f"v_exp_f32 v{PH+16+i}, v{PH+16+i}")
    for i in range(8): a(f"v_add_f32 v{PH+16+i}, 1.0, v{PH+16+i}")
    for i in range(8): a(f"v_rcp_f32 v{PH+16+i}, v{PH+16+i}")
    for i in range(8): a(f"v_mul_f32 v{PH+i}, v{PH+i}, v{PH+16+i}")
    for i in range(4): a(f"v_cvt_pk_bf16_f32 v{PH+8+i}, v{PH+2*i}, v{PH+2*i+1}")
    a(f"ds_write_b64 v4, {vr(PH+8,2)}\nds_write_b64 v4, {vr(PH+10,2)} offset:512")
    a("s_waitcnt lgkmcnt(0)")
    a.a_read(VA, 11)
    a("s_waitcnt lgkmcnt(0)")
    a.gemv4(VA, VW, VD, False)
    a.select4(VD)
    a(f"v_mov_b32 v9, s{sTO}")
    a.embed(range(VD, VD+4), 9, TAGO)
    a(f"s_and_b32 s{sT0}, s2, 7\ns_mul_i32 s{sT0}, s{sT0}, 48\ns_add_u32 s{sT0}, s{sT0}, s{sRB}\ns_add_u32 s{sT0}, s{sT0}, 32")
    a(f"s_lshl_b32 s{sT0}, s{sT0}, 10\ns_add_u32 s{sT0}, s{sT0}, {WS_RP}")
    a(f"buffer_store_dwordx4 {vr(VD,4)}, v8, {srd(sWS)}, s{sT0} offen sc1")
    a.label("L_end")
    a("s_endpgm")
    return wrap(a.text(), 256, 640, LDS_SIZE, 160)

if __name__ == "__main__":
    open("k1.s", "w").write(gen(False))
    open("k1_st.s", "w").write(gen(True))
```
